```python
import torch

def _softmax(x, axis=-1):
    return torch.softmax(x, dim=axis)
def _gelu(x):
    return torch.nn.functional.gelu(x, approximate="tanh")
def _silu(x):
    return torch.nn.functional.silu(x)
def _sigmoid(x):
    return torch.sigmoid(x)
def _layernorm(x, axis=-1, eps=1e-5):
    m = x.mean(dim=axis, keepdim=True)
    v = x.var(dim=axis, keepdim=True, unbiased=False)
    return (x - m) / torch.sqrt(v + eps)
def _scatter_add(tgt, idx, src, axis=0):
    return tgt.clone().index_add_(axis, idx, src)
def _segment_sum(src, seg, n):
    out = torch.zeros((n,) + src.shape[1:], dtype=src.dtype)
    return out.index_add_(0, seg, src)
def _pad(x, pw):
    flat = tuple(v for pair in reversed(pw) for v in pair)
    return torch.nn.functional.pad(x, flat)

kernel_name = 'standalone__sliding_local_strided__prompt'

def setup_inputs():

    _w = (lambda a: (lambda t: t.to(torch.bfloat16) if t.is_floating_point() else t)(torch.as_tensor(a)))
    B, H, S, D = 1, 32, 2048, 128
    return {
        "q": _w((lambda *s: torch.randn(*s, dtype=torch.bfloat16) * 0.8)(B, H, S, D)),
        "k": _w((lambda *s: torch.randn(*s, dtype=torch.bfloat16) * 0.8)(B, H, S, D)),
        "v": _w((lambda *s: torch.randn(*s, dtype=torch.bfloat16) * 0.05)(B, H, S, D)),
    }

def reference(q, k, v):
    B, H, S, D = q.shape
    W, dil = 8, 4
    scale = D ** -0.5
    pos = torch.arange(S)
    kidx = pos[:, None] - torch.arange(W)[None, :] * dil
    valid = kidx >= 0
    kidx = torch.where(valid, kidx, torch.zeros_like(kidx))
    idx = torch.reshape(kidx, (1, 1, S * W, 1))
    idx = (lambda x, n, axis: torch.repeat_interleave(x, n, dim=axis))(idx, B, 0)
    idx = (lambda x, n, axis: torch.repeat_interleave(x, n, dim=axis))(idx, H, 1)
    idx = (lambda x, n, axis: torch.repeat_interleave(x, n, dim=axis))(idx, D, 3)
    kg = torch.reshape((lambda x, i, axis: torch.take_along_dim(x, i, dim=axis))(k, idx, 2), (B, H, S, W, D))
    vg = torch.reshape((lambda x, i, axis: torch.take_along_dim(x, i, dim=axis))(v, idx, 2), (B, H, S, W, D))
    scores = torch.einsum("bhsd,bhswd->bhsw", q, kg) * scale
    mask_f = (lambda x, dt: x.to(dt))(valid, q.dtype)[None, None, :, :]
    scores = scores + (mask_f - 1.0) * 1e9
    p = _softmax(scores, axis=-1)
    return torch.einsum("bhsw,bhswd->bhsd", p, vg)
```

```python
import sys, math, argparse

HEADER = open('standalone__sliding_local_strided__prompt.s.ref').read().split('\n')
HEADER = [l for l in HEADER if l.startswith(';') and '@launch' not in l]
NAME = 'standalone__sliding_local_strided__prompt_kernel'

def gen(NT=4, WPG=4, polq='', polk='', polv='', polo='', mapping='hfast', order='kqv'):
    SUBS = WPG // 4
    SEGS = 512 // (SUBS * NT * 16)
    GRID = 32 * SEGS
    L = []
    e = L.append
    for h in HEADER: e(h)
    e(f'; @launch grid=({GRID},1,1) block=({WPG*64},1,1) lds=0')
    e('.amdgcn_target "amdgcn-amd-amdhsa--gfx950"')
    e('.text')
    e(f'.globl {NAME}')
    e('.p2align 8')
    e(f'.type {NAME},@function')
    e(f'{NAME}:')
    e('  s_load_dwordx4 s[4:7], s[0:1], 0')
    e('  s_load_dwordx4 s[8:11], s[0:1], 16')
    e(f'  s_cmp_ge_u32 s2, {GRID}')
    e('  s_cbranch_scc1 L_end')
    if mapping == 'hfast':
        e('  s_and_b32 s3, s2, 31')
        e('  s_lshr_b32 s2, s2, 5')
    else:
        lg = int(math.log2(SEGS))
        e(f'  s_lshr_b32 s3, s2, {lg}')
        e(f'  s_and_b32 s2, s2, {SEGS-1}')
    e('  s_lshl_b32 s3, s3, 19')
    e(f'  s_mul_i32 s2, s2, {SUBS*NT*16384}')
    VQ, VO, VQH, VOH = 1, 2, 3, 4
    T0, T1, T2, T3 = 5, 6, 7, 8
    e(f'  v_and_b32 v{T0}, 15, v0')
    e(f'  v_bfe_u32 v{T1}, v0, 4, 2')
    e(f'  v_bfe_u32 v{T2}, v0, 6, 2')
    e(f'  v_lshlrev_b32 v{T2}, 8, v{T2}')
    if SUBS > 1:
        e(f'  v_lshrrev_b32 v{T3}, 8, v0')
        e(f'  v_mul_u32_u24 v{T3}, {NT*16384}, v{T3}')
        e(f'  v_add_u32 v{T2}, v{T2}, v{T3}')
    e(f'  v_add_u32 v{T2}, s2, v{T2}')
    e(f'  v_lshl_add_u32 v{VQ}, v{T0}, 10, v{T2}')
    e(f'  v_lshl_add_u32 v{VQ}, v{T1}, 4, v{VQ}')
    e(f'  v_lshl_add_u32 v{VO}, v{T1}, 12, v{T2}')
    e(f'  v_lshl_add_u32 v{VO}, v{T0}, 4, v{VO}')
    e(f'  v_cmp_gt_u32 vcc, 9, v{T0}')
    e(f'  v_mov_b32 v{T3}, 0x4000')
    e(f'  v_mov_b32 v9, 0x40004000')
    e(f'  v_cndmask_b32 v10, v{T3}, v9, vcc')
    e(f'  v_sub_u32 v{VQH}, v{VQ}, v10')
    e(f'  v_cmp_gt_u32 vcc, 2, v{T1}')
    e(f'  s_brev_b32 s28, 1')
    e(f'  v_min_u32 v{VQH}, s28, v{VQH}')
    e(f'  v_cndmask_b32 v10, v{T3}, v9, vcc')
    e(f'  v_sub_u32 v{VOH}, v{VO}, v10')
    e(f'  v_min_u32 v{VOH}, s28, v{VOH}')
    for b in range(1, NT):
        e(f'  s_mov_b32 s{28+b}, {16384*b}')
    so = lambda b: '0' if b == 0 else f's{28+b}'
    e('  s_mov_b32 s14, 0x80000'); e('  s_mov_b32 s15, 0x20000')
    e('  s_mov_b32 s18, 0x80000'); e('  s_mov_b32 s19, 0x20000')
    e('  s_mov_b32 s22, 0x80000'); e('  s_mov_b32 s23, 0x20000')
    e('  s_mov_b32 s26, 0x80000'); e('  s_mov_b32 s27, 0x20000')
    e('  s_waitcnt lgkmcnt(0)')
    for (d, s) in ((16, 6), (12, 4), (20, 8), (24, 10)):
        e(f'  s_add_u32 s{d}, s{s}, s3')
        e(f'  s_addc_u32 s{d+1}, s{s+1}, 0')
    QA = lambda T, t: 16*T + 4*t
    KA = lambda b, t: 16*NT + 16*(b+1) + 4*t
    NA = 16*NT + 16*(NT+1)
    VR0 = 40
    VR = lambda b, i: VR0 + 16*(b+1) + 4*i
    VT0 = VR0 + 16*(NT+1)
    O0 = VT0 + 32
    OUT0 = O0 + 32
    NV = OUT0 + 16
    CP, CC, CP0 = 12, 16, 20
    MP01, MP23 = 10, 11
    SP, SC = 24, 28
    PA = 32
    M, TM = 36, 37
    E = 38
    loads = []
    def ld(tag, txt):
        loads.append(tag); e(txt)
    def loadK(b):
        for t in range(4):
            if b < 0:
                ld(('K', b), f'  buffer_load_dwordx4 a[{KA(b,t)}:{KA(b,t)+3}], v{VQH}, s[16:19], 0 offen offset:{64*t} {polk}')
            else:
                ld(('K', b), f'  buffer_load_dwordx4 a[{KA(b,t)}:{KA(b,t)+3}], v{VQ}, s[16:19], {so(b)} offen offset:{64*t} {polk}')
    def loadQ(T):
        for t in range(4):
            ld(('Q', T), f'  buffer_load_dwordx4 a[{QA(T,t)}:{QA(T,t)+3}], v{VQ}, s[12:15], {so(T)} offen offset:{64*t} {polq}')
    def loadV(b):
        for i in range(4):
            if b < 0:
                ld(('V', b), f'  buffer_load_dwordx4 v[{VR(b,i)}:{VR(b,i)+3}], v{VOH}, s[20:23], 0 offen offset:{1024*i} {polv}')
            else:
                ld(('V', b), f'  buffer_load_dwordx4 v[{VR(b,i)}:{VR(b,i)+3}], v{VO}, s[20:23], {so(b)} offen offset:{1024*i} {polv}')
    for T in range(NT):
        for ch in order:
            if ch == 'k':
                loadK(T)
                if T == 0: loadK(-1)
            elif ch == 'q':
                loadQ(T)
            else:
                loadV(T)
                if T == 0: loadV(-1)
    nstores = [0]
    def waitfor(tags):
        last = max(i for i, t in enumerate(loads) if t in tags)
        n = len(loads) - 1 - last + nstores[0]
        e(f'  s_waitcnt vmcnt({min(n,63)})')
    e(f'  v_lshlrev_b32 v{T1}, 2, v{T1}')
    e(f'  v_sub_u32 v{T1}, v{T1}, v{T0}')
    e(f'  v_mov_b32 v{T3}, 0xf149f2ca')
    e(f'  v_cmp_gt_u32 s[40:41], 0x4000, v{VQ}') if False else None
    e(f'  v_mov_b32 v9, 0x4000')
    e(f'  v_cmp_gt_u32 s[40:41], v9, v{VQ}')
    for rr in range(4):
        e(f'  v_add_u32 v9, {rr+7}, v{T1}')
        e(f'  v_cmp_ge_u32 vcc, 7, v9')
        e(f'  v_cmp_le_i32 s[42:43], 16, v9')
        e(f'  s_nop 0')
        e(f'  v_cndmask_b32 v{CC+rr}, v{T3}, 0, vcc')
        e(f'  v_cndmask_b32 v{CP+rr}, v{T3}, 0, s[42:43]')
        e(f'  v_cndmask_b32 v{CP0+rr}, v{CP+rr}, v{T3}, s[40:41]')
    e(f'  v_mov_b32 v{T0}, 0xffff')
    e(f'  v_mov_b32 v{T2}, 0xffff0000')
    for (mreg, r0) in ((MP01, 0), (MP23, 2)):
        e(f'  v_cmp_lt_i32 vcc, {-r0}, v{T1}')
        e(f'  v_cmp_lt_i32 s[42:43], {-r0-1}, v{T1}')
        e(f'  s_nop 1')
        e(f'  v_cndmask_b32 v9, 0, v{T0}, vcc')
        e(f'  v_cndmask_b32 v{mreg}, 0, v{T2}, s[42:43]')
        e(f'  v_or_b32 v{mreg}, v{mreg}, v9')
    e('  s_mov_b32 s44, 0x05040100')
    e('  s_mov_b32 s45, 0x07060302')
    c = (128 ** -0.5) * math.log2(math.e)
    import struct
    cbits = struct.unpack('<I', struct.pack('<f', c))[0]
    e(f'  s_mov_b32 s46, {cbits:#x}')
    def transposeV(b):
        slot = (b + 1) & 1
        for cc in range(8):
            sel = 's44' if (cc & 1) == 0 else 's45'
            k = cc >> 1
            e(f'  v_perm_b32 v{VT0+4*cc+2*slot}, v{VR(b,1)+k}, v{VR(b,0)+k}, {sel}')
            e(f'  v_perm_b32 v{VT0+4*cc+2*slot+1}, v{VR(b,3)+k}, v{VR(b,2)+k}, {sel}')
    for T in range(NT):
        waitfor([('K', T), ('K', T-1), ('Q', T)])
        cp = CP0 if T == 0 else CP
        for t in range(4):
            cin = f'v[{cp}:{cp+3}]' if t == 0 else f'v[{SP}:{SP+3}]'
            e(f'  v_mfma_f32_16x16x32_bf16 v[{SP}:{SP+3}], a[{KA(T-1,t)}:{KA(T-1,t)+3}], a[{QA(T,t)}:{QA(T,t)+3}], {cin}')
            cin = f'v[{CC}:{CC+3}]' if t == 0 else f'v[{SC}:{SC+3}]'
            e(f'  v_mfma_f32_16x16x32_bf16 v[{SC}:{SC+3}], a[{KA(T,t)}:{KA(T,t)+3}], a[{QA(T,t)}:{QA(T,t)+3}], {cin}')
        e('  s_nop 7')
        for rr in range(4):
            e(f'  v_max_f32 v{SP+rr}, v{SP+rr}, v{SC+rr}')
        e(f'  v_max3_f32 v{M}, v{SP}, v{SP+1}, v{SP+2}')
        e(f'  v_max_f32 v{M}, v{M}, v{SP+3}')
        e(f'  v_mov_b32 v{TM}, v{M}')
        e('  s_nop 1')
        e(f'  v_permlane32_swap_b32 v{M}, v{TM}')
        e(f'  v_max_f32 v{M}, v{M}, v{TM}')
        e(f'  v_mov_b32 v{TM}, v{M}')
        e('  s_nop 1')
        e(f'  v_permlane16_swap_b32 v{M}, v{TM}')
        e(f'  v_max_f32 v{M}, v{M}, v{TM}')
        e(f'  v_mul_f32 v{M}, s46, v{M}')
        for rr in range(4):
            e(f'  v_fma_f32 v{SP+rr}, v{SP+rr}, s46, -v{M}')
        for rr in range(4):
            e(f'  v_exp_f32 v{SP+rr}, v{SP+rr}')
        e('  s_nop 0')
        e(f'  v_add_f32 v{M}, v{SP}, v{SP+1}')
        e(f'  v_add_f32 v{TM}, v{SP+2}, v{SP+3}')
        e(f'  v_add_f32 v{M}, v{M}, v{TM}')
        e(f'  v_mov_b32 v{TM}, v{M}')
        e('  s_nop 1')
        e(f'  v_permlane32_swap_b32 v{M}, v{TM}')
        e(f'  v_add_f32 v{M}, v{M}, v{TM}')
        e(f'  v_mov_b32 v{TM}, v{M}')
        e('  s_nop 1')
        e(f'  v_permlane16_swap_b32 v{M}, v{TM}')
        e(f'  v_add_f32 v{M}, v{M}, v{TM}')
        e(f'  v_rcp_f32 v{M}, v{M}')
        e('  s_nop 0')
        for rr in range(4):
            e(f'  v_mul_f32 v{SP+rr}, v{SP+rr}, v{M}')
        e(f'  v_cvt_pk_bf16_f32 v{SC}, v{SP}, v{SP+1}')
        e(f'  v_cvt_pk_bf16_f32 v{SC+1}, v{SP+2}, v{SP+3}')
        sp, sc = T & 1, (T + 1) & 1
        e(f'  v_and_b32 v{PA+2*sp}, v{SC}, v{MP01}')
        e(f'  v_and_b32 v{PA+2*sp+1}, v{SC+1}, v{MP23}')
        e(f'  v_bfi_b32 v{PA+2*sc}, v{MP01}, 0, v{SC}')
        e(f'  v_bfi_b32 v{PA+2*sc+1}, v{MP23}, 0, v{SC+1}')
        waitfor([('V', T), ('V', T-1)])
        if T == 0: transposeV(-1)
        transposeV(T)
        e('  s_nop 1')
        for cc in range(8):
            e(f'  v_mfma_f32_16x16x32_bf16 v[{O0+4*cc}:{O0+4*cc+3}], v[{PA}:{PA+3}], v[{VT0+4*cc}:{VT0+4*cc+3}], 0')
        e('  s_nop 7')
        for rr in range(4):
            for k in range(4):
                e(f'  v_cvt_pk_bf16_f32 v{OUT0+4*rr+k}, v{O0+8*k+rr}, v{O0+8*k+4+rr}')
            e(f'  buffer_store_dwordx4 v[{OUT0+4*rr}:{OUT0+4*rr+3}], v{VO}, s[24:27], {so(T)} offen offset:{1024*rr} {polo}')
            nstores[0] += 1
    e('L_end:')
    e('  s_endpgm')
    acc = (NV + 3) // 4 * 4
    e('.section .rodata,"a"')
    e('.p2align 6')
    e(f'.amdhsa_kernel {NAME}')
    e(f'  .amdhsa_next_free_vgpr {acc + NA}')
    e('  .amdhsa_next_free_sgpr 64')
    e(f'  .amdhsa_accum_offset {acc}')
    e('  .amdhsa_group_segment_fixed_size 0')
    e('  .amdhsa_kernarg_size 48')
    e('  .amdhsa_user_sgpr_count 2')
    e('  .amdhsa_user_sgpr_kernarg_segment_ptr 1')
    e('  .amdhsa_system_sgpr_workgroup_id_x 1')
    e('.end_amdhsa_kernel')
    return '\n'.join(x for x in L if x is not None) + '\n'

if __name__ == '__main__':
    ap = argparse.ArgumentParser()
    ap.add_argument('-o', default='/dev/stdout')
    ap.add_argument('--nt', type=int, default=4)
    ap.add_argument('--wpg', type=int, default=4)
    ap.add_argument('--polq', default=''); ap.add_argument('--polk', default='')
    ap.add_argument('--polv', default=''); ap.add_argument('--polo', default='')
    ap.add_argument('--map', default='hfast'); ap.add_argument('--order', default='kqv')
    a = ap.parse_args()
    open(a.o, 'w').write(gen(a.nt, a.wpg, a.polq, a.polk, a.polv, a.polo, a.map, a.order))
```

```python
import sys
NAME='standalone__sliding_local_strided__prompt_kernel'
def kd(name, vg=16):
    return f'''
.section .rodata,"a"
.p2align 6
.amdhsa_kernel {name}
  .amdhsa_next_free_vgpr {vg}
  .amdhsa_next_free_sgpr 32
  .amdhsa_accum_offset {vg}
  .amdhsa_group_segment_fixed_size 0
  .amdhsa_kernarg_size 48
  .amdhsa_user_sgpr_count 2
  .amdhsa_user_sgpr_kernarg_segment_ptr 1
  .amdhsa_system_sgpr_workgroup_id_x 1
.end_amdhsa_kernel
'''
def head(name):
    return f'''
.text
.globl {name}
.p2align 8
.type {name},@function
{name}:
'''
def touch(name, shift):
    npages = (1<<24)>>shift
    per_wg = max(1, npages//32)
    iters = max(1, per_wg//256)
    s = head(name)
    s += f'''
  s_load_dwordx4 s[4:7], s[0:1], 0
  s_load_dwordx4 s[8:11], s[0:1], 16
  s_cmp_ge_u32 s2, 256
  s_cbranch_scc1 {name}_end
  s_lshr_b32 s3, s2, 3
  s_mul_i32 s3, s3, {per_wg}
  v_add_u32 v1, s3, v0
  v_lshlrev_b32 v1, {shift}, v1
  v_cmp_gt_u32 vcc, {min(per_wg,256)}, v0
  v_mov_b32 v2, -16
  s_nop 1
  v_cndmask_b32 v1, v2, v1, vcc
  s_waitcnt lgkmcnt(0)
  s_mov_b32 s14, 0x1000000
  s_mov_b32 s15, 0x20000
'''
    r=4
    for p in (4,6,8,10):
        s += f'  s_mov_b32 s12, s{p}\n  s_mov_b32 s13, s{p+1}\n'
        for it in range(iters):
            s += f'  s_mov_b32 s16, {it*256<<shift}\n  buffer_load_dword v3, v1, s[12:15], s16 offen\n'
    s += f'  s_waitcnt vmcnt(0)\n{name}_end:\n  s_endpgm\n' + kd(name)
    return s
def spin(name, ticks):
    s = head(name)
    s += f'''
  s_memrealtime s[4:5]
  s_waitcnt lgkmcnt(0)
  s_add_u32 s6, s4, {ticks}
{name}_loop:
  s_sleep 2
  s_memrealtime s[4:5]
  s_waitcnt lgkmcnt(0)
  s_sub_i32 s7, s4, s6
  s_cmp_lt_i32 s7, 0
  s_cbranch_scc1 {name}_loop
  s_endpgm
''' + kd(name)
    return s
```

```python
import sys,re
from exp_lists_lib import *
base=open(sys.argv[1]).read()
m=re.search(r'; @launch (grid=\S+ block=\S+ lds=\d+)', base)
real=f'; @launch kernel={NAME} {m.group(1)}'
def stamp(name, slot):
    return head(name)+f'''
  s_memrealtime s[8:9]
  s_load_dwordx2 s[4:5], s[0:1], 40
  s_cmp_ge_u32 s2, 1
  s_cbranch_scc1 {name}_end
  s_waitcnt lgkmcnt(0)
  s_mov_b32 s6, 0x1000
  s_mov_b32 s7, 0x20000
  v_mov_b32 v1, s8
  v_mov_b32 v2, {slot*4}
  buffer_store_dword v1, v2, s[4:7], 0 offen
  s_waitcnt vmcnt(0)
{name}_end:
  s_endpgm
'''+kd(name)
def waituntil(name, ticks, mul=0):
    return head(name)+f'''
  s_memrealtime s[10:11]
  s_load_dwordx2 s[4:5], s[0:1], 40
  s_cmp_ge_u32 s2, 1
  s_cbranch_scc1 {name}_end
  s_waitcnt lgkmcnt(0)
  s_load_dword s8, s[4:5], 0
  s_waitcnt lgkmcnt(0)
  s_sub_u32 s12, s10, s8
  s_min_u32 s12, s12, 5000
  s_mul_i32 s12, s12, {mul}
  s_add_u32 s6, s8, {ticks}
  s_add_u32 s6, s6, s12
  s_mov_b32 s13, 0
{name}_loop:
  s_memrealtime s[4:5]
  s_add_u32 s13, s13, 1
  s_cmp_ge_u32 s13, 200000
  s_cbranch_scc1 {name}_end
  s_waitcnt lgkmcnt(0)
  s_sub_i32 s7, s4, s6
  s_cmp_lt_i32 s7, 0
  s_cbranch_scc1 {name}_loop
{name}_end:
  s_endpgm
'''+kd(name)
L1='; @launch kernel=stamp_kernel grid=(1,1,1) block=(64,1,1) lds=0'
L3='; @launch kernel=until_kernel grid=(1,1,1) block=(64,1,1) lds=0'
open('gen/y_f50.s','w').write(base.replace(m.group(0), L1+'\n'+real+'\n'+L3)+stamp('stamp_kernel',0)+waituntil('until_kernel',5000,0))
open('gen/y_f50m.s','w').write(base.replace(m.group(0), L1+'\n'+real+'\n'+L3)+stamp('stamp_kernel',0)+waituntil('until_kernel',5000,4))
open('gen/y_f50m2.s','w').write(base.replace(m.group(0), real+'\n'+L1+'\n'+real+'\n'+L3)+stamp('stamp_kernel',0)+waituntil('until_kernel',5000,4))
open('gen/y_f50b.s','w').write(base.replace(m.group(0), real+'\n'+L1+'\n'+real+'\n'+L3)+stamp('stamp_kernel',0)+waituntil('until_kernel',5000,0))
```

```python
import math, argparse, struct
HEADER = open('standalone__sliding_local_strided__prompt.s.ref').read().split('\n')
HEADER = [l for l in HEADER if l.startswith(';') and '@launch' not in l]
NAME = 'standalone__sliding_local_strided__prompt_kernel'
DOC = '''; Design (memory bound, ~67 MB of compulsory traffic):
;  * workgroup id -> (head = 4*(id&7) + (id>>6), segment = (id>>3)&7): speed only.'''

def gen(P=12, P0=12, pol='nt', polh='', polo='', sched='S0 O0 S1 O1 S2 O2 S3 O3', ts0=False, warmo=False, order=None, ts2=False):
    NT, WPG, GRID = 4, 4, 256
    WLDS = (2*NT + 1) * 4096
    PT = [{'d':'','s':'sc1','n':'nt'}[ch] for ch in polo] if len(polo) == 4 and set(polo) <= set('dsn') else [polo]*4
    L = []; e = L.append
    for h in HEADER: e(h)
    e(f'; @launch grid=({GRID},1,1) block=({WPG*64},1,1) lds={WLDS*WPG}')
    e(DOC)
    e('.amdgcn_target "amdgcn-amd-amdhsa--gfx950"\n.text')
    e(f'.globl {NAME}\n.p2align 8\n.type {NAME},@function\n{NAME}:')
    if ts0 or ts2:
        e('  s_memrealtime s[52:53]\n  s_load_dwordx2 s[48:49], s[0:1], 40\n  s_mov_b32 s47, s2')
    e('  ; SRDs: Q s[12:15]  K s[16:19]  V s[20:23]  O s[24:27]')
    e('  s_load_dwordx2 s[16:17], s[0:1], 8')
    e('  s_load_dwordx2 s[12:13], s[0:1], 0')
    e('  s_load_dwordx2 s[20:21], s[0:1], 16')
    e('  s_load_dwordx2 s[24:25], s[0:1], 24')
    e(f'  s_cmp_ge_u32 s2, {GRID}')
    e('  s_cbranch_scc1 L_end')
    e('  s_and_b32 s3, s2, 7')
    e('  s_lshl_b32 s3, s3, 21')
    e('  s_lshr_b32 s4, s2, 6')
    e('  s_lshl_b32 s4, s4, 19')
    e('  s_add_u32 s3, s3, s4')
    e('  s_bfe_u32 s2, s2, 0x30003               ; segment 0..7')
    e('  s_lshl_b32 s4, s2, 16')
    e('  s_add_u32 s28, s3, s4')
    e('  s_cmp_eq_u32 s2, 0')
    e('  s_cselect_b32 s5, 0x40000000, 0')
    e('  s_cselect_b64 s[40:41], -1, 0')
    VD, VO, VDH, VOH, RA = 1, 5, 6, 10, 11
    T0, T1, T2, T3, T4 = 15, 16, 17, 18, 19
    e(f'  v_and_b32 v{T0}, 15, v0                 ; j / m / i')
    e(f'  v_bfe_u32 v{T1}, v0, 4, 2               ; g')
    e(f'  v_lshrrev_b32 v{T2}, 6, v0')
    e(f'  v_lshlrev_b32 v{T3}, 8, v{T2}')
    e(f'  v_lshl_add_u32 v{T3}, v{T1}, 12, v{T3}')
    e(f'  v_readfirstlane_b32 s6, v{T2}')
    e(f'  v_lshl_add_u32 v{VO}, v{T0}, 4, v{T3}')
    e(f'  v_lshlrev_b32 v{T4}, 6, v{T1}')
    e(f'  v_xor_b32 v{VD}, v{VO}, v{T4}')
    e(f'  s_mul_i32 s6, s6, {WLDS}')
    for k in (1, 2, 3): e(f'  v_xor_b32 v{VD+k}, {16*k}, v{VD}')
    for d in (18, 14, 22, 26): e(f'  s_mov_b32 s{d}, 0x1000000\n  s_mov_b32 s{d+1}, 0x20000')
    for b in range(1, NT): e(f'  s_add_u32 s{28+b}, s28, {16384*b}')
    e('  s_sub_u32 s7, s28, 0x4000')
    e('  s_max_i32 s7, s7, 0')
    e(f'  v_cmp_gt_u32 vcc, 2, v{T1}')
    e(f'  v_mov_b32 v{T4}, s5')
    e(f'  v_mov_b32 v{T3}, 0x40000000')
    e(f'  v_cndmask_b32 v{T4}, v{T4}, v{T3}, vcc')
    for k in range(4): e(f'  v_or_b32 v{VDH+k}, v{VD+k}, v{T4}')
    e(f'  v_or_b32 v{VOH}, v{VO}, v{T4}')
    so = lambda b: 's7' if b < 0 else f's{28+b}'
    KL = lambda b: 4096*(b+1)
    QL = lambda T: 4096*(NT+1+T)
    CP, CC, CP0 = 20, 24, 28
    MP01, MP23, M, TM = 32, 33, 34, 35
    SP, SC = 36, 40
    PA = lambda T: 44 + 4*T
    KF = lambda b, t: 16*((b+1)&1) + 4*t
    QF = lambda t: 32 + 4*t
    NA = 48
    VT0, O0, OUTB, VR0 = 60, 92, 124, 188
    OUT0 = OUTB
    explicit_w = 'W' in sched
    NVS = 4
    VR = lambda b, i: VR0 + 16*((b+1) % NVS) + 4*i
    NV = VR0 + 16*NVS
    ops = []
    def dma(kind, b, srd, ldsoff):
        e(f'  s_add_u32 m0, s6, {ldsoff}\n  s_nop 0')
        for k in range(4):
            vo = (VDH if b < 0 else VD) + k
            e(f'  buffer_load_dwordx4 v{vo}, s[{srd}:{srd+3}], {so(b)} offen offset:{1024*k} {polh if b < 0 else pol} lds')
            ops.append((kind, b))
    def loadV(b):
        for i in range(4):
            e(f'  buffer_load_dwordx4 v[{VR(b,i)}:{VR(b,i)+3}], v{VOH if b < 0 else VO}, s[20:23], {so(b)} offen offset:{1024*i} {polh if b < 0 else pol}')
            ops.append(('V', b))
    steps = sched.split()
    groups = []
    for st in steps:
        T = int(st[1])
        if st[0] == 'S': groups += [('K', T)] + ([('K', -1)] if T == 0 else []) + [('Q', T)]
        elif st[0] == 'O': groups += ([('V', -1)] if T == 0 else []) + [('V', T)]
    if order:
        g2 = [(t[0], -1 if t[1] == 'h' else int(t[1])) for t in order.split()]
        assert sorted(g2) == sorted(groups); groups = g2
    gpos, waited, vdone = [0], [0], set()
    def issue(upto):
        while gpos[0] < min(len(groups), upto):
            k, b = groups[gpos[0]]; gpos[0] += 1
            if k == 'K': dma('K', b, 16, KL(b))
            elif k == 'Q': dma('Q', b, 12, QL(b))
            else:
                assert (b - NVS) < -1 or (b - NVS) in vdone, 'V ring slot still in use'
                loadV(b)
    def wait_groups(tags, refill_last=True):
        last = max(groups.index(t) for t in tags)
        while waited[0] <= last:
            g = groups[waited[0]]; issue(waited[0] + 1); waited[0] += 1
            idx = max(i for i, t in enumerate(ops) if t == g)
            e(f'  s_waitcnt vmcnt({len(ops)-1-idx})')
            if waited[0] <= last or refill_last: issue(waited[0] + P // 4)
    e('  s_waitcnt lgkmcnt(0)')
    issue(1 + P0 // 4)
    if warmo:
        e(f'  v_mov_b32 v{T3}, 0')
        e(f'  buffer_load_dword v{OUT0}, v{T3}, s[24:27], s28 offen')
        ops.append(('W', 0))
    if ts0:
        e('  s_mov_b32 s50, 0x1000000\n  s_mov_b32 s51, 0x20000')
        e(f'  s_lshl_b32 s47, s47, 8\n  v_and_b32 v{T3}, 0xc0, v0\n  v_add_u32 v{T3}, s47, v{T3}\n  v_mov_b32 v{T4}, s52')
        e(f'  buffer_store_dword v{T4}, v{T3}, s[48:51], 0 offen sc1'); ops.append(('X', 0))
    e(f'  v_and_b32 v{T3}, 3, v{T0}')
    e(f'  v_lshlrev_b32 v{T3}, 10, v{T3}')
    e(f'  v_lshrrev_b32 v{T4}, 2, v{T0}')
    e(f'  v_lshl_add_u32 v{T3}, v{T4}, 8, v{T3}')
    e(f'  v_xor_b32 v{T4}, v{T1}, v{T0}')
    e(f'  v_lshl_add_u32 v{T3}, v{T4}, 4, v{T3}')
    e(f'  v_add_u32 v{RA}, s6, v{T3}')
    for t in (1, 2, 3): e(f'  v_xor_b32 v{RA+t}, {64*t}, v{RA}')
    e(f'  v_lshlrev_b32 v{T1}, 2, v{T1}')
    e(f'  v_sub_u32 v{T1}, v{T1}, v{T0}')
    e(f'  v_mov_b32 v{T3}, 0xf149f2ca             ; -1e30')
    for rr in range(4):
        e(f'  v_add_u32 v{T4}, {rr+7}, v{T1}')
        e(f'  v_cmp_ge_u32 vcc, 7, v{T4}')
        e(f'  v_cmp_le_i32 s[42:43], 16, v{T4}')
        e(f'  s_nop 0')
        e(f'  v_cndmask_b32 v{CC+rr}, v{T3}, 0, vcc')
        e(f'  v_cndmask_b32 v{CP+rr}, v{T3}, 0, s[42:43]')
        e(f'  v_cndmask_b32 v{CP0+rr}, v{CP+rr}, v{T3}, s[40:41]')
    e(f'  v_mov_b32 v{T0}, 0xffff')
    e(f'  v_mov_b32 v{T2}, 0xffff0000')
    for (mreg, r0) in ((MP01, 0), (MP23, 2)):
        e(f'  v_cmp_lt_i32 vcc, {-r0}, v{T1}')
        e(f'  v_cmp_lt_i32 s[42:43], {-r0-1}, v{T1}')
        e(f'  s_nop 1')
        e(f'  v_cndmask_b32 v{T4}, 0, v{T0}, vcc')
        e(f'  v_cndmask_b32 v{mreg}, 0, v{T2}, s[42:43]')
        e(f'  v_or_b32 v{mreg}, v{mreg}, v{T4}')
    e('  s_mov_b32 s44, 0x05040100')
    e('  s_mov_b32 s45, 0x07060302')
    c = (128 ** -0.5) * math.log2(math.e)
    e(f'  s_mov_b32 s46, {struct.unpack("<I", struct.pack("<f", c))[0]:#x}           ; D^-0.5 * log2(e)')
    def perm2(b, cc):
        slot = (b + 1) & 1
        sel = 's44' if (cc & 1) == 0 else 's45'
        k = cc >> 1
        e(f'  v_perm_b32 v{VT0+4*cc+2*slot}, v{VR(b,1)+k}, v{VR(b,0)+k}, {sel}')
        e(f'  v_perm_b32 v{VT0+4*cc+2*slot+1}, v{VR(b,3)+k}, v{VR(b,2)+k}, {sel}')
    def store(T, rr):
        o = OUTB + 16*T + 4*rr
        e(f'  buffer_store_dwordx4 v[{o}:{o+3}], v{VO}, s[24:27], {so(T)} offen offset:{1024*rr} {PT[T]}')
        ops.append(('S', T))
    def xrow(op):
        for sw in ('32', '16'):
            e(f'  v_mov_b32 v{TM}, v{M}\n  s_nop 1\n  v_permlane{sw}_swap_b32 v{M}, v{TM}\n  {op} v{M}, v{M}, v{TM}')
    for st in steps:
        T = int(st[1])
        if st[0] == 'S':
            e(f'  ; ---- tile {T}: scores and softmax')
            wait_groups([('Q', T), ('K', T), ('K', T-1)], refill_last=False)
            if T == 0:
                for t in range(4): e(f'  ds_read_b128 a[{KF(-1,t)}:{KF(-1,t)+3}], v{RA+t} offset:{KL(-1)}')
            for t in range(4):
                e(f'  ds_read_b128 a[{QF(t)}:{QF(t)+3}], v{RA+t} offset:{QL(T)}')
                e(f'  ds_read_b128 a[{KF(T,t)}:{KF(T,t)+3}], v{RA+t} offset:{KL(T)}')
            issue(waited[0] + P // 4)
            cp = CP0 if T == 0 else CP
            for t in range(4):
                e(f'  s_waitcnt lgkmcnt({2*(3-t)+1})')
                cin = f'v[{cp}:{cp+3}]' if t == 0 else f'v[{SP}:{SP+3}]'
                e(f'  v_mfma_f32_16x16x32_bf16 v[{SP}:{SP+3}], a[{KF(T-1,t)}:{KF(T-1,t)+3}], a[{QF(t)}:{QF(t)+3}], {cin}')
                e(f'  s_waitcnt lgkmcnt({2*(3-t)})')
                cin = f'v[{CC}:{CC+3}]' if t == 0 else f'v[{SC}:{SC+3}]'
                e(f'  v_mfma_f32_16x16x32_bf16 v[{SC}:{SC+3}], a[{KF(T,t)}:{KF(T,t)+3}], a[{QF(t)}:{QF(t)+3}], {cin}')
            e('  s_nop 7')
            for rr in range(4): e(f'  v_max_f32 v{SP+rr}, v{SP+rr}, v{SC+rr}')
            e(f'  v_max3_f32 v{M}, v{SP}, v{SP+1}, v{SP+2}')
            e(f'  v_max_f32 v{M}, v{M}, v{SP+3}')
            xrow('v_max_f32')
            e(f'  v_mul_f32 v{M}, s46, v{M}')
            for rr in range(4): e(f'  v_fma_f32 v{SP+rr}, v{SP+rr}, s46, -v{M}')
            for rr in range(4): e(f'  v_exp_f32 v{SP+rr}, v{SP+rr}')
            e(f'  v_add_f32 v{M}, v{SP}, v{SP+1}')
            e(f'  v_add_f32 v{TM}, v{SP+2}, v{SP+3}')
            e(f'  v_add_f32 v{M}, v{M}, v{TM}')
            xrow('v_add_f32')
            e(f'  v_rcp_f32 v{M}, v{M}\n  s_nop 0')
            for rr in range(4): e(f'  v_mul_f32 v{SP+rr}, v{SP+rr}, v{M}')
            e(f'  v_cvt_pk_bf16_f32 v{SC}, v{SP}, v{SP+1}')
            e(f'  v_cvt_pk_bf16_f32 v{SC+1}, v{SP+2}, v{SP+3}')
            sp, sc = T & 1, (T + 1) & 1
            e(f'  v_and_b32 v{PA(T)+2*sp}, v{SC}, v{MP01}')
            e(f'  v_and_b32 v{PA(T)+2*sp+1}, v{SC+1}, v{MP23}')
            e(f'  v_bfi_b32 v{PA(T)+2*sc}, v{MP01}, 0, v{SC}')
            e(f'  v_bfi_b32 v{PA(T)+2*sc+1}, v{MP23}, 0, v{SC+1}')
        elif st[0] == 'W':
            for rr in range(4): store(T, rr)
        else:
            OUT0 = OUTB + 16*T
            e(f'  ; ---- tile {T}: O = P V')
            if T == 0:
                wait_groups([('V', -1)])
                for cc in range(8): perm2(-1, cc)
                vdone.add(-1)
            wait_groups([('V', T)])
            if ts2 and T == NT-1: e('  s_memrealtime s[56:57]')
            perm2(T, 0); perm2(T, 1)
            for cc in range(8):
                if cc == 7: e('  s_nop 0')
                e(f'  v_mfma_f32_16x16x32_bf16 v[{O0+4*cc}:{O0+4*cc+3}], v[{PA(T)}:{PA(T)+3}], v[{VT0+4*cc}:{VT0+4*cc+3}], 0')
                if cc + 2 < 8: perm2(T, cc + 2)
            vdone.add(T)
            for k in range(3):
                for rr in range(4): e(f'  v_cvt_pk_bf16_f32 v{OUT0+4*rr+k}, v{O0+8*k+rr}, v{O0+8*k+4+rr}')
            for rr in range(4):
                e(f'  v_cvt_pk_bf16_f32 v{OUT0+4*rr+3}, v{O0+24+rr}, v{O0+28+rr}')
                if not explicit_w: store(T, rr)
    if ts2:
        e('  s_memrealtime s[58:59]\n  s_waitcnt vmcnt(0)\n  s_memrealtime s[54:55]\n  s_waitcnt lgkmcnt(0)\n  v_mov_b32 v5, 0')
        e('  v_writelane_b32 v5, s52, 0\n  v_writelane_b32 v5, s56, 1\n  v_writelane_b32 v5, s58, 2\n  v_writelane_b32 v5, s54, 3')
        e('  s_getreg_b32 s52, hwreg(HW_REG_XCC_ID)\n  v_writelane_b32 v5, s52, 14')
        e('  s_mov_b32 s50, 0x1000000\n  s_mov_b32 s51, 0x20000\n  s_lshl_b32 s47, s47, 8')
        e('  v_and_b32 v6, 0xc0, v0\n  v_add_u32 v6, s47, v6\n  v_and_b32 v7, 63, v0\n  v_lshl_add_u32 v6, v7, 2, v6')
        e('  v_cmp_gt_u32 vcc, 16, v7\n  v_mov_b32 v8, -16\n  s_nop 1\n  v_cndmask_b32 v6, v8, v6, vcc')
        e('  buffer_store_dword v5, v6, s[48:51], 0 offen sc1')
    e('L_end:\n  s_endpgm')
    acc = (NV + 3) // 4 * 4
    e(f'''.section .rodata,"a"
.p2align 6
.amdhsa_kernel {NAME}
  .amdhsa_next_free_vgpr {acc + NA}
  .amdhsa_next_free_sgpr {64 if ts2 else 56}
  .amdhsa_accum_offset {acc}
  .amdhsa_group_segment_fixed_size 0
  .amdhsa_kernarg_size 48
  .amdhsa_user_sgpr_count 2
  .amdhsa_user_sgpr_kernarg_segment_ptr 1
  .amdhsa_system_sgpr_workgroup_id_x 1
  .amdhsa_float_denorm_mode_32 3
.end_amdhsa_kernel''')
    return '\n'.join(x.rstrip() for x in '\n'.join(L).split('\n')) + '\n'

if __name__ == '__main__':
    ap = argparse.ArgumentParser()
    ap.add_argument('-o', default='/dev/stdout')
    ap.add_argument('--p', type=int, default=12); ap.add_argument('--p0', type=int, default=12)
    ap.add_argument('--pol', default='nt'); ap.add_argument('--polh', default=''); ap.add_argument('--polo', default='')
    ap.add_argument('--sched', default='S0 O0 S1 O1 S2 O2 S3 O3'); ap.add_argument('--ts0', action='store_true')
    ap.add_argument('--warmo', action='store_true')
    ap.add_argument('--order', default=None)
    ap.add_argument('--ts2', action='store_true')
    a = ap.parse_args()
    open(a.o, 'w').write(gen(a.p, a.p0, a.pol, a.polh, a.polo, a.sched, a.ts0, a.warmo, a.order, a.ts2))
```

```python
import math, argparse, struct
HEADER = open('standalone__sliding_local_strided__prompt.s.ref').read().split('\n')
HEADER = [l for l in HEADER if l.startswith(';') and '@launch' not in l]
NAME = 'standalone__sliding_local_strided__prompt_kernel'
DOC = '''; Design (memory bound, ~67 MB of compulsory traffic):
;  * workgroup id -> (head = 4*(id&7) + (id>>6), segment = (id>>3)&7): speed only.'''

def gen(P=12, P0=12, pol='nt', polh='', polo='', sched='S0 O0 S1 O1 S2 O2 S3 O3', ts0=False, warmo=False, order=None, ts2=False, mimic=True):
    NT, WPG, GRID = 4, 4, 256
    WLDS = (2*NT + 1) * 4096
    PT = [{'d':'','s':'sc1','n':'nt'}[ch] for ch in polo] if len(polo) == 4 and set(polo) <= set('dsn') else [polo]*4
    L = []; e = L.append
    for h in HEADER: e(h)
    e(f'; @launch grid=({GRID},1,1) block=({WPG*64},1,1) lds={WLDS*WPG}')
    e(DOC)
    e('.amdgcn_target "amdgcn-amd-amdhsa--gfx950"\n.text')
    e(f'.globl {NAME}\n.p2align 8\n.type {NAME},@function\n{NAME}:')
    if ts0 or ts2:
        e('  s_memrealtime s[52:53]\n  s_load_dwordx2 s[48:49], s[0:1], 40\n  s_mov_b32 s39, s2')
    e('  ; SRDs: Q s[12:15]  K s[16:19]  V s[20:23]  O s[24:27]')
    e('  s_load_dwordx2 s[16:17], s[0:1], 8')
    e('  s_load_dwordx2 s[12:13], s[0:1], 0')
    e('  s_load_dwordx2 s[20:21], s[0:1], 16')
    e('  s_load_dwordx2 s[24:25], s[0:1], 24')
    e(f'  s_cmp_ge_u32 s2, {GRID}')
    e('  s_cbranch_scc1 L_end')
    e('  s_and_b32 s3, s2, 7')
    e('  s_lshl_b32 s3, s3, 21')
    e('  s_lshr_b32 s4, s2, 6')
    e('  s_lshl_b32 s4, s4, 19')
    e('  s_add_u32 s3, s3, s4')
    e('  s_bfe_u32 s2, s2, 0x30003               ; segment 0..7')
    e('  s_lshl_b32 s4, s2, 16')
    e('  s_add_u32 s28, s3, s4')
    e('  s_cmp_eq_u32 s2, 0')
    e('  s_cselect_b32 s5, 0x40000000, 0')
    e('  s_cselect_b64 s[40:41], -1, 0')
    VD, VO, VDH, VOH, RA = 1, 5, 6, 10, 11
    T0, T1, T2, T3, T4 = 15, 16, 17, 18, 19
    e(f'  v_and_b32 v{T0}, 15, v0                 ; j / m / i')
    e(f'  v_bfe_u32 v{T1}, v0, 4, 2               ; g')
    e(f'  v_lshrrev_b32 v{T2}, 6, v0')
    e(f'  v_lshlrev_b32 v{T3}, 8, v{T2}')
    e(f'  v_lshl_add_u32 v{T3}, v{T1}, 12, v{T3}')
    e(f'  v_readfirstlane_b32 s6, v{T2}')
    e(f'  v_lshl_add_u32 v{VO}, v{T0}, 4, v{T3}')
    e(f'  v_lshlrev_b32 v{T4}, 6, v{T1}')
    e(f'  v_xor_b32 v{VD}, v{VO}, v{T4}')
    e(f'  s_mul_i32 s6, s6, {WLDS}')
    for k in (1, 2, 3): e(f'  v_xor_b32 v{VD+k}, {16*k}, v{VD}')
    for d in (18, 14, 22, 26): e(f'  s_mov_b32 s{d}, 0x1000000\n  s_mov_b32 s{d+1}, 0x20000')
    for b in range(1, NT): e(f'  s_add_u32 s{28+b}, s28, {16384*b}')
    e('  s_sub_u32 s7, s28, 0x4000')
    e('  s_max_i32 s7, s7, 0')
    e(f'  v_cmp_gt_u32 vcc, 2, v{T1}')
    e(f'  v_mov_b32 v{T4}, s5')
    e(f'  v_mov_b32 v{T3}, 0x40000000')
    e(f'  v_cndmask_b32 v{T4}, v{T4}, v{T3}, vcc')
    for k in range(4): e(f'  v_or_b32 v{VDH+k}, v{VD+k}, v{T4}')
    e(f'  v_or_b32 v{VOH}, v{VO}, v{T4}')
    so = lambda b: 's7' if b < 0 else f's{28+b}'
    KL = lambda b: 4096*(b+1)
    QL = lambda T: 4096*(NT+1+T)
    CP, CC, CP0 = 20, 24, 28
    MP01, MP23, M, TM = 32, 33, 34, 35
    SP, SC = 36, 40
    PA = lambda T: 44 + 4*T
    KF = lambda b, t: 16*((b+1)&1) + 4*t
    QF = lambda t: 32 + 4*t
    NA = 48
    VT0, O0, OUTB, VR0 = 60, 92, 124, 188
    OUT0 = OUTB
    explicit_w = 'W' in sched
    NVS = 4
    VR = lambda b, i: VR0 + 16*((b+1) % NVS) + 4*i
    NV = VR0 + 16*NVS
    ops = []
    def dma(kind, b, srd, ldsoff):
        e(f'  s_add_u32 m0, s6, {ldsoff}\n  s_nop 0')
        for k in range(4):
            vo = (VDH if b < 0 else VD) + k
            e(f'  buffer_load_dwordx4 v{vo}, s[{srd}:{srd+3}], {so(b)} offen offset:{1024*k} {polh if b < 0 else pol} lds')
            ops.append((kind, b))
    def loadV(b):
        for i in range(4):
            e(f'  buffer_load_dwordx4 v[{VR(b,i)}:{VR(b,i)+3}], v{VOH if b < 0 else VO}, s[20:23], {so(b)} offen offset:{1024*i} {polh if b < 0 else pol}')
            ops.append(('V', b))
    steps = sched.split()
    groups = []
    for st in steps:
        T = int(st[1])
        if st[0] == 'S': groups += [('K', T)] + ([('K', -1)] if T == 0 else []) + [('Q', T)]
        elif st[0] == 'O': groups += ([('V', -1)] if T == 0 else []) + [('V', T)]
    if order:
        g2 = [(t[0], -1 if t[1] == 'h' else int(t[1])) for t in order.split()]
        assert sorted(g2) == sorted(groups); groups = g2
    gpos, waited, vdone = [0], [0], set()
    def issue(upto):
        while gpos[0] < min(len(groups), upto):
            k, b = groups[gpos[0]]; gpos[0] += 1
            if k == 'K': dma('K', b, 16, KL(b))
            elif k == 'Q': dma('Q', b, 12, QL(b))
            else:
                assert (b - NVS) < -1 or (b - NVS) in vdone, 'V ring slot still in use'
                loadV(b)
    def wait_groups(tags, refill_last=True):
        last = max(groups.index(t) for t in tags)
        while waited[0] <= last:
            g = groups[waited[0]]; issue(waited[0] + 1); waited[0] += 1
            idx = max(i for i, t in enumerate(ops) if t == g)
            e(f'  s_waitcnt vmcnt({len(ops)-1-idx})')
            if waited[0] <= last or refill_last: issue(waited[0] + P // 4)
    e('  s_waitcnt lgkmcnt(0)')
    issue(1 + P0 // 4)
    if warmo:
        e(f'  v_mov_b32 v{T3}, 0')
        e(f'  buffer_load_dword v{OUT0}, v{T3}, s[24:27], s28 offen')
        ops.append(('W', 0))
    if ts0:
        e('  s_mov_b32 s50, 0x1000000\n  s_mov_b32 s51, 0x20000')
        e(f'  s_lshl_b32 s39, s39, 8\n  v_and_b32 v{T3}, 0xc0, v0\n  v_add_u32 v{T3}, s39, v{T3}\n  v_mov_b32 v{T4}, s52')
        e(f'  buffer_store_dword v{T4}, v{T3}, s[48:51], 0 offen sc1'); ops.append(('X', 0))
    e(f'  v_and_b32 v{T3}, 3, v{T0}')
    e(f'  v_lshlrev_b32 v{T3}, 10, v{T3}')
    e(f'  v_lshrrev_b32 v{T4}, 2, v{T0}')
    e(f'  v_lshl_add_u32 v{T3}, v{T4}, 8, v{T3}')
    e(f'  v_xor_b32 v{T4}, v{T1}, v{T0}')
    e(f'  v_lshl_add_u32 v{T3}, v{T4}, 4, v{T3}')
    e(f'  v_add_u32 v{RA}, s6, v{T3}')
    for t in (1, 2, 3): e(f'  v_xor_b32 v{RA+t}, {64*t}, v{RA}')
    e(f'  v_lshlrev_b32 v{T1}, 2, v{T1}')
    e(f'  v_sub_u32 v{T1}, v{T1}, v{T0}')
    e(f'  v_mov_b32 v{T3}, 0xf149f2ca             ; -1e30')
    for rr in range(4):
        e(f'  v_add_u32 v{T4}, {rr+7}, v{T1}')
        e(f'  v_cmp_ge_u32 vcc, 7, v{T4}')
        e(f'  v_cmp_le_i32 s[42:43], 16, v{T4}')
        e(f'  s_nop 0')
        e(f'  v_cndmask_b32 v{CC+rr}, v{T3}, 0, vcc')
        e(f'  v_cndmask_b32 v{CP+rr}, v{T3}, 0, s[42:43]')
        e(f'  v_cndmask_b32 v{CP0+rr}, v{CP+rr}, v{T3}, s[40:41]')
    e(f'  v_mov_b32 v{T0}, 0xffff')
    e(f'  v_mov_b32 v{T2}, 0xffff0000')
    for (mreg, r0) in ((MP01, 0), (MP23, 2)):
        e(f'  v_cmp_lt_i32 vcc, {-r0}, v{T1}')
        e(f'  v_cmp_lt_i32 s[42:43], {-r0-1}, v{T1}')
        e(f'  s_nop 1')
        e(f'  v_cndmask_b32 v{T4}, 0, v{T0}, vcc')
        e(f'  v_cndmask_b32 v{mreg}, 0, v{T2}, s[42:43]')
        e(f'  v_or_b32 v{mreg}, v{mreg}, v{T4}')
    e('  s_mov_b32 s44, 0x05040100')
    e('  s_mov_b32 s45, 0x07060302')
    f32 = lambda x: struct.unpack("<I", struct.pack("<f", x))[0]
    if mimic:
        e(f'  s_mov_b32 s46, {f32(math.log2(math.e)):#x}           ; log2(e)')
        e(f'  s_mov_b32 s47, {f32(128 ** -0.5):#x}           ; D^-0.5')
    else:
        e(f'  s_mov_b32 s46, {f32((128 ** -0.5) * math.log2(math.e)):#x}           ; D^-0.5 * log2(e)')
    def perm2(b, cc):
        slot = (b + 1) & 1
        sel = 's44' if (cc & 1) == 0 else 's45'
        k = cc >> 1
        e(f'  v_perm_b32 v{VT0+4*cc+2*slot}, v{VR(b,1)+k}, v{VR(b,0)+k}, {sel}')
        e(f'  v_perm_b32 v{VT0+4*cc+2*slot+1}, v{VR(b,3)+k}, v{VR(b,2)+k}, {sel}')
    def store(T, rr):
        o = OUTB + 16*T + 4*rr
        e(f'  buffer_store_dwordx4 v[{o}:{o+3}], v{VO}, s[24:27], {so(T)} offen offset:{1024*rr} {PT[T]}')
        ops.append(('S', T))
    def xrow(op):
        for sw in ('32', '16'):
            e(f'  v_mov_b32 v{TM}, v{M}\n  s_nop 1\n  v_permlane{sw}_swap_b32 v{M}, v{TM}\n  {op} v{M}, v{M}, v{TM}')
    for st in steps:
        T = int(st[1])
        if st[0] == 'S':
            e(f'  ; ---- tile {T}: scores and softmax')
            wait_groups([('Q', T), ('K', T), ('K', T-1)], refill_last=False)
            if T == 0:
                for t in range(4): e(f'  ds_read_b128 a[{KF(-1,t)}:{KF(-1,t)+3}], v{RA+t} offset:{KL(-1)}')
            for t in range(4):
                e(f'  ds_read_b128 a[{QF(t)}:{QF(t)+3}], v{RA+t} offset:{QL(T)}')
                e(f'  ds_read_b128 a[{KF(T,t)}:{KF(T,t)+3}], v{RA+t} offset:{KL(T)}')
            issue(waited[0] + P // 4)
            cp = CP0 if T == 0 else CP
            for t in range(4):
                e(f'  s_waitcnt lgkmcnt({2*(3-t)+1})')
                cin = f'v[{cp}:{cp+3}]' if t == 0 else f'v[{SP}:{SP+3}]'
                e(f'  v_mfma_f32_16x16x32_bf16 v[{SP}:{SP+3}], a[{KF(T-1,t)}:{KF(T-1,t)+3}], a[{QF(t)}:{QF(t)+3}], {cin}')
                e(f'  s_waitcnt lgkmcnt({2*(3-t)})')
                cin = f'v[{CC}:{CC+3}]' if t == 0 else f'v[{SC}:{SC+3}]'
                e(f'  v_mfma_f32_16x16x32_bf16 v[{SC}:{SC+3}], a[{KF(T,t)}:{KF(T,t)+3}], a[{QF(t)}:{QF(t)+3}], {cin}')
            e('  s_nop 7')
            for rr in range(4): e(f'  v_max_f32 v{SP+rr}, v{SP+rr}, v{SC+rr}')
            if mimic:
                def rnd():
                    e(f'  v_cvt_pk_bf16_f32 v{SC}, v{SP}, v{SP+1}')
                    e(f'  v_cvt_pk_bf16_f32 v{SC+1}, v{SP+2}, v{SP+3}')
                    e(f'  v_lshlrev_b32 v{SP}, 16, v{SC}')
                    e(f'  v_and_b32 v{SP+1}, 0xffff0000, v{SC}')
                    e(f'  v_lshlrev_b32 v{SP+2}, 16, v{SC+1}')
                    e(f'  v_and_b32 v{SP+3}, 0xffff0000, v{SC+1}')
                rnd()
                for rr in range(4): e(f'  v_mul_f32 v{SP+rr}, s47, v{SP+rr}')
                rnd()
            e(f'  v_max3_f32 v{M}, v{SP}, v{SP+1}, v{SP+2}')
            e(f'  v_max_f32 v{M}, v{M}, v{SP+3}')
            xrow('v_max_f32')
            e(f'  v_mul_f32 v{M}, s46, v{M}')
            for rr in range(4): e(f'  v_fma_f32 v{SP+rr}, v{SP+rr}, s46, -v{M}')
            for rr in range(4): e(f'  v_exp_f32 v{SP+rr}, v{SP+rr}')
            e(f'  v_add_f32 v{M}, v{SP}, v{SP+1}')
            e(f'  v_add_f32 v{TM}, v{SP+2}, v{SP+3}')
            e(f'  v_add_f32 v{M}, v{M}, v{TM}')
            xrow('v_add_f32')
            e(f'  v_rcp_f32 v{M}, v{M}\n  s_nop 0')
            for rr in range(4): e(f'  v_mul_f32 v{SP+rr}, v{SP+rr}, v{M}')
            e(f'  v_cvt_pk_bf16_f32 v{SC}, v{SP}, v{SP+1}')
            e(f'  v_cvt_pk_bf16_f32 v{SC+1}, v{SP+2}, v{SP+3}')
            sp, sc = T & 1, (T + 1) & 1
            e(f'  v_and_b32 v{PA(T)+2*sp}, v{SC}, v{MP01}')
            e(f'  v_and_b32 v{PA(T)+2*sp+1}, v{SC+1}, v{MP23}')
            e(f'  v_bfi_b32 v{PA(T)+2*sc}, v{MP01}, 0, v{SC}')
            e(f'  v_bfi_b32 v{PA(T)+2*sc+1}, v{MP23}, 0, v{SC+1}')
        elif st[0] == 'W':
            for rr in range(4): store(T, rr)
        else:
            OUT0 = OUTB + 16*T
            e(f'  ; ---- tile {T}: O = P V')
            if T == 0:
                wait_groups([('V', -1)])
                for cc in range(8): perm2(-1, cc)
                vdone.add(-1)
            wait_groups([('V', T)])
            if ts2 and T == NT-1: e('  s_memrealtime s[56:57]')
            perm2(T, 0); perm2(T, 1)
            for cc in range(8):
                if cc == 7: e('  s_nop 0')
                e(f'  v_mfma_f32_16x16x32_bf16 v[{O0+4*cc}:{O0+4*cc+3}], v[{PA(T)}:{PA(T)+3}], v[{VT0+4*cc}:{VT0+4*cc+3}], 0')
                if cc + 2 < 8: perm2(T, cc + 2)
            vdone.add(T)
            for k in range(3):
                for rr in range(4): e(f'  v_cvt_pk_bf16_f32 v{OUT0+4*rr+k}, v{O0+8*k+rr}, v{O0+8*k+4+rr}')
            for rr in range(4):
                e(f'  v_cvt_pk_bf16_f32 v{OUT0+4*rr+3}, v{O0+24+rr}, v{O0+28+rr}')
                if not explicit_w: store(T, rr)
    if ts2:
        e('  s_memrealtime s[58:59]\n  s_waitcnt vmcnt(0)\n  s_memrealtime s[54:55]\n  s_waitcnt lgkmcnt(0)\n  v_mov_b32 v5, 0')
        e('  v_writelane_b32 v5, s52, 0\n  v_writelane_b32 v5, s56, 1\n  v_writelane_b32 v5, s58, 2\n  v_writelane_b32 v5, s54, 3')
        e('  s_getreg_b32 s52, hwreg(HW_REG_XCC_ID)\n  v_writelane_b32 v5, s52, 14')
        e('  s_mov_b32 s50, 0x1000000\n  s_mov_b32 s51, 0x20000\n  s_lshl_b32 s39, s39, 8')
        e('  v_and_b32 v6, 0xc0, v0\n  v_add_u32 v6, s39, v6\n  v_and_b32 v7, 63, v0\n  v_lshl_add_u32 v6, v7, 2, v6')
        e('  v_cmp_gt_u32 vcc, 16, v7\n  v_mov_b32 v8, -16\n  s_nop 1\n  v_cndmask_b32 v6, v8, v6, vcc')
        e('  buffer_store_dword v5, v6, s[48:51], 0 offen sc1')
    e('L_end:\n  s_endpgm')
    acc = (NV + 3) // 4 * 4
    e(f'''.section .rodata,"a"
.p2align 6
.amdhsa_kernel {NAME}
  .amdhsa_next_free_vgpr {acc + NA}
  .amdhsa_next_free_sgpr {64 if ts2 else 56}
  .amdhsa_accum_offset {acc}
  .amdhsa_group_segment_fixed_size 0
  .amdhsa_kernarg_size 48
  .amdhsa_user_sgpr_count 2
  .amdhsa_user_sgpr_kernarg_segment_ptr 1
  .amdhsa_system_sgpr_workgroup_id_x 1
  .amdhsa_float_denorm_mode_32 3
.end_amdhsa_kernel''')
    return '\n'.join(x.rstrip() for x in '\n'.join(L).split('\n')) + '\n'

if __name__ == '__main__':
    ap = argparse.ArgumentParser()
    ap.add_argument('-o', default='/dev/stdout')
    ap.add_argument('--p', type=int, default=12); ap.add_argument('--p0', type=int, default=12)
    ap.add_argument('--pol', default='nt'); ap.add_argument('--polh', default=''); ap.add_argument('--polo', default='')
    ap.add_argument('--sched', default='S0 O0 S1 O1 S2 O2 S3 O3'); ap.add_argument('--ts0', action='store_true')
    ap.add_argument('--warmo', action='store_true')
    ap.add_argument('--order', default=None)
    ap.add_argument('--ts2', action='store_true')
    ap.add_argument('--nomimic', action='store_true')
    a = ap.parse_args()
    open(a.o, 'w').write(gen(a.p, a.p0, a.pol, a.polh, a.polo, a.sched, a.ts0, a.warmo, a.order, a.ts2, not a.nomimic))
```
